```python
import torch

def _softmax(x, axis=-1):
    return torch.softmax(x, dim=axis)
def _gelu(x):
    return torch.nn.functional.gelu(x, approximate="tanh")
def _silu(x):
    return torch.nn.functional.silu(x)
def _sigmoid(x):
    return torch.sigmoid(x)
def _layernorm(x, axis=-1, eps=1e-5):
    m = x.mean(dim=axis, keepdim=True)
    v = x.var(dim=axis, keepdim=True, unbiased=False)
    return (x - m) / torch.sqrt(v + eps)
def _scatter_add(tgt, idx, src, axis=0):
    return tgt.clone().index_add_(axis, idx, src)
def _segment_sum(src, seg, n):
    out = torch.zeros((n,) + src.shape[1:], dtype=src.dtype)
    return out.index_add_(0, seg, src)
def _pad(x, pw):
    flat = tuple(v for pair in reversed(pw) for v in pair)
    return torch.nn.functional.pad(x, flat)

kernel_name = 'concat_heads__ssm_conv_s5__softmax_full_mha__prompt'

def setup_inputs():

    _w = (lambda a: (lambda t: t.to(torch.bfloat16) if t.is_floating_point() else t)(torch.as_tensor(a)))
    def _A_setup():
        B, S, D = 1, 2048, 640
        P = D
        Lambda_re = -0.5 * (lambda _x: torch.exp(torch.as_tensor(_x)))((lambda *s: torch.randn(*s, dtype=torch.bfloat16) * 0.8)(P))
        Lambda_im = (lambda *s: torch.randn(*s, dtype=torch.bfloat16) * 0.8)(P) * 1.0
        B_re = (lambda *s: torch.randn(*s, dtype=torch.bfloat16) * 0.8)(P, D) * (D ** -0.5)
        B_im = (lambda *s: torch.randn(*s, dtype=torch.bfloat16) * 0.8)(P, D) * (D ** -0.5)
        C_re = (lambda *s: torch.randn(*s, dtype=torch.bfloat16) * 0.8)(D, P) * (P ** -0.5)
        C_im = (lambda *s: torch.randn(*s, dtype=torch.bfloat16) * 0.8)(D, P) * (P ** -0.5)
        log_dt = (lambda *s: torch.randn(*s, dtype=torch.bfloat16) * 0.8)(P) * 0.3 - 2.0
        Dskip = (lambda *s: torch.randn(*s, dtype=torch.bfloat16) * 0.8)(D)
        return {
            "x": _w((lambda *s: torch.randn(*s, dtype=torch.bfloat16) * 0.05)(B, S, D)),
            "Lambda_re": _w(Lambda_re),
            "Lambda_im": _w(Lambda_im),
            "B_re": _w(B_re),
            "B_im": _w(B_im),
            "C_re": _w(C_re),
            "C_im": _w(C_im),
            "log_dt": _w(log_dt),
            "Dskip": _w(Dskip),
        }
    _A_in = _A_setup()

    def _B_setup():
        B, S, D = 1, 2048, 640
        return {
            "x": _w((lambda *s: torch.randn(*s, dtype=torch.bfloat16) * 0.2)(B, S, D)),
            "wqkv": _w((lambda *s: torch.randn(*s, dtype=torch.bfloat16) * 0.2)(D, 3 * D)),
            "wo": _w((lambda *s: torch.randn(*s, dtype=torch.bfloat16) * 0.05)(D, D)),
        }
    _B_in = _B_setup()

    return {
        "A_x": _A_in["x"],
        "A_Lambda_re": _A_in["Lambda_re"],
        "A_Lambda_im": _A_in["Lambda_im"],
        "A_B_re": _A_in["B_re"],
        "A_B_im": _A_in["B_im"],
        "A_C_re": _A_in["C_re"],
        "A_C_im": _A_in["C_im"],
        "A_log_dt": _A_in["log_dt"],
        "A_Dskip": _A_in["Dskip"],
        "B_x": _B_in["x"],
        "B_wqkv": _B_in["wqkv"],
        "B_wo": _B_in["wo"],
    }

def reference(A_x, A_Lambda_re, A_Lambda_im, A_B_re, A_B_im, A_C_re, A_C_im, A_log_dt, A_Dskip, B_x, B_wqkv, B_wo):
    def _A_ref(x, Lambda_re, Lambda_im, B_re, B_im, C_re, C_im, log_dt, Dskip):
        Bsz, L, H = x.shape
        Lam = Lambda_re + 1j * Lambda_im
        Bmat = B_re + 1j * B_im
        Cmat = C_re + 1j * C_im
        dt = torch.exp(log_dt)
        Lam_bar = torch.exp(dt * Lam)
        B_bar = ((Lam_bar - 1.0) / Lam)[:, None] * Bmat
        Bu = torch.einsum("bld,pd->blp", x + 0j, B_bar)
        h = torch.zeros_like(Bu[:, 0, :])
        hs = []
        for t in range(L):
            h = Lam_bar[None, :] * h + Bu[:, t, :]
            hs.append(h)
        hseq = torch.stack(hs, 1)
        y = 2.0 * torch.einsum("blp,dp->bld", hseq, Cmat).real + x * Dskip[None, None, :]
        return y

    def _B_ref(x, wqkv, wo):
        B, S, D = x.shape
        H = 32; Dh = D // H
        qkv = (lambda x, *d: x.permute(*d))((x @ wqkv).reshape(B, S, 3, H, Dh), 2, 0, 3, 1, 4)
        q, k, v = qkv[0], qkv[1], qkv[2]
        scale = Dh ** -0.5
        scores = torch.einsum("bhqd,bhkd->bhqk", q, k) * scale
        p = _softmax(scores, axis=-1)
        o = torch.einsum("bhqk,bhkd->bhqd", p, v)
        return (lambda x, *d: x.permute(*d))(o, 0, 2, 1, 3).reshape(B, S, D) @ wo

    a = _A_ref(A_x, A_Lambda_re, A_Lambda_im, A_B_re, A_B_im, A_C_re, A_C_im, A_log_dt, A_Dskip)
    b = _B_ref(B_x, B_wqkv, B_wo)
    return torch.concatenate([a, b], axis=-1)
```

```python
import sys
def gen(name, body, iters, wps, nv=128, pre="", lds=0, grid=256):
    block = 256 * wps
    assert block <= 1024
    s = f"""; @launch grid=({grid},1,1) block=({block},1,1) lds={lds}
.amdgcn_target "amdgcn-amd-amdhsa--gfx950"
.text
.globl mb_kernel
.p2align 8
.type mb_kernel,@function
mb_kernel:
  s_load_dwordx2 s[4:5], s[0:1], 0
  s_load_dwordx2 s[6:7], s[0:1], 8
  s_waitcnt lgkmcnt(0)
  s_mov_b32 s8, s4
  s_mov_b32 s9, s5
  s_mov_b32 s10, 0x400000
  s_mov_b32 s11, 0x00020000
  s_mov_b32 s12, s6
  s_mov_b32 s13, s7
  s_mov_b32 s14, 0x1000000
  s_mov_b32 s15, 0x00020000
  v_lshrrev_b32 v1, 6, v0
  s_nop 1
  v_readfirstlane_b32 s20, v1
  s_mul_i32 s21, s2, {block//64}
  s_add_u32 s21, s21, s20
  s_lshl_b32 s21, s21, 3
  v_and_b32 v2, 63, v0
  v_lshlrev_b32 v3, 4, v0
"""
    for i in range(4, nv):
        s += f"  v_mov_b32 v{i}, 0x3c003c00\n" if i % 2 else f"  v_mov_b32 v{i}, 0xbc00bc00\n"
    s += pre
    s += f"""  s_barrier
  s_mov_b32 s22, {iters}
  s_memtime s[24:25]
  s_memrealtime s[28:29]
  s_waitcnt lgkmcnt(0)
.p2align 6
L_loop:
{body}
  s_sub_u32 s22, s22, 1
  s_cmp_lg_u32 s22, 0
  s_cbranch_scc1 L_loop
  s_nop 15
  s_nop 15
  s_memtime s[26:27]
  s_memrealtime s[30:31]
  s_waitcnt lgkmcnt(0)
  s_sub_u32 s26, s26, s24
  s_sub_u32 s30, s30, s28
  v_mov_b32 v4, s26
  v_mov_b32 v5, s30
  v_mov_b32 v6, s21
  v_cmp_eq_u32 vcc, 0, v2
  s_and_saveexec_b64 s[32:33], vcc
  buffer_store_dwordx2 v[4:5], v6, s[8:11], 0 offen
  s_waitcnt vmcnt(0)
  s_endpgm
.section .rodata,"a"
.p2align 6
.amdhsa_kernel mb_kernel
  .amdhsa_next_free_vgpr {nv}
  .amdhsa_next_free_sgpr 64
  .amdhsa_accum_offset {nv}
  .amdhsa_group_segment_fixed_size 0
  .amdhsa_kernarg_size 16
  .amdhsa_user_sgpr_count 2
  .amdhsa_user_sgpr_kernarg_segment_ptr 1
  .amdhsa_system_sgpr_workgroup_id_x 1
.end_amdhsa_kernel
"""
    open(name, "w").write(s)

files = []
def add(tag, body, iters=1000, wpss=(1,2,4), **kw):
    for w in wpss:
        n = f"mb_{tag}_w{w}.s"
        gen(n, body, iters, w, **kw)
        files.append(n)

if __name__ == "__main__":
    add("exp32", "\n".join(f"  v_exp_f32 v{64+i}, v{16+i}" for i in range(32)))
    add("fma32", "\n".join(f"  v_fma_f32 v{64+i}, v{16+i}, v{17+i}, v{64+i}" for i in range(32)))
    add("add32", "\n".join(f"  v_add_f32 v{64+i}, v{16+i}, v{17+i}" for i in range(32)))
    add("cvt32", "\n".join(f"  v_cvt_pk_bf16_f32 v{64+i}, v{16+i}, v{17+i}" for i in range(32)))
    add("pkfma16", "\n".join(f"  v_pk_fma_f32 v[{64+2*i}:{65+2*i}], v[{16+2*i}:{17+2*i}], v[{18+2*i}:{19+2*i}], v[{64+2*i}:{65+2*i}]" for i in range(16)))
    add("mfma4", "\n".join(f"  v_mfma_f32_32x32x16_bf16 v[{64+16*i}:{79+16*i}], v[8:11], v[12:15], v[{64+16*i}:{79+16*i}]" for i in range(4)))
    b = []
    for j in range(4):
        b.append(f"  v_mfma_f32_32x32x16_bf16 v[{64+16*(j%2)}:{79+16*(j%2)}], v[8:11], v[12:15], v[{64+16*(j%2)}:{79+16*(j%2)}]")
        for i in range(4):
            b.append(f"  v_exp_f32 v{96+4*j+i}, v{16+4*j+i}")
        for i in range(2):
            b.append(f"  v_cvt_pk_bf16_f32 v{112+2*j+i}, v{32+4*j+2*i}, v{33+4*j+2*i}")
    add("attn", "\n".join(b))
    b = []
    for j in range(4):
        for i in range(4):
            b.append(f"  v_exp_f32 v{96+4*j+i}, v{16+4*j+i}")
        for i in range(2):
            b.append(f"  v_cvt_pk_bf16_f32 v{112+2*j+i}, v{32+4*j+2*i}, v{33+4*j+2*i}")
    add("expcvt", "\n".join(b))
    b = []
    for j in range(4):
        b.append(f"  v_mfma_f32_32x32x16_bf16 v[{64+16*(j%2)}:{79+16*(j%2)}], v[8:11], v[12:15], v[{64+16*(j%2)}:{79+16*(j%2)}]")
        for i in range(4):
            b.append(f"  v_exp_f32 v{96+4*j+i}, v{16+4*j+i}")
    add("expmfma", "\n".join(b))
    b = []
    for j in range(16):
        b.append(f"  v_exp_f32 v{96+j}, v{16+j}")
        b.append(f"  v_fma_f32 v{64+j}, v{32+j}, v{33+j}, v{64+j}")
    add("expfma", "\n".join(b))
    print(" ".join(files))
```

```python
from mb_gen import *
U = 8
def addu(tag, body, u=U, **kw):
    add(tag, "\n".join([body]*u), iters=200, **kw)
def mf(j, n=2):
    return f"  v_mfma_f32_32x32x16_bf16 v[{64+16*(j%n)}:{79+16*(j%n)}], v[8:11], v[12:15], v[{64+16*(j%n)}:{79+16*(j%n)}]"
addu("exp16", "\n".join(f"  v_exp_f32 v{64+i}, v{16+i}" for i in range(16)))
addu("fma16", "\n".join(f"  v_fma_f32 v{64+i}, v{16+i}, v{17+i}, v{64+i}" for i in range(16)))
addu("cvt16", "\n".join(f"  v_cvt_pk_bf16_f32 v{64+i}, v{16+i}, v{17+i}" for i in range(16)))
addu("perm16", "\n".join(f"  v_perm_b32 v{64+i}, v{16+i}, v{17+i}, v4" for i in range(16)))
addu("andor16", "\n".join(f"  v_and_or_b32 v{64+i}, v{16+i}, v4, v{17+i}" for i in range(16)))
addu("max3_16", "\n".join(f"  v_max3_f32 v{64+i}, v{16+i}, v4, v{17+i}" for i in range(16)))
addu("cvtf16_16", "\n".join(f"  v_cvt_pkrtz_f16_f32 v{64+i}, v{16+i}, v{17+i}" for i in range(16)))
addu("expf16_16", "\n".join(f"  v_exp_f16 v{64+i}, v{16+i}" for i in range(16)))
def tile(mfma=True, exp=True, cv="cvt", nm=4):
    b = []
    for j in range(4):
        if mfma:
            for _ in range(nm//4): b.append(mf(j))
        if exp:
            for i in range(4):
                b.append(f"  v_exp_f32 v{96+4*j+i}, v{16+4*j+i}")
        for i in range(2):
            if cv == "cvt":
                b.append(f"  v_cvt_pk_bf16_f32 v{112+2*j+i}, v{32+4*j+2*i}, v{33+4*j+2*i}")
            elif cv == "perm":
                b.append(f"  v_perm_b32 v{112+2*j+i}, v{32+4*j+2*i}, v{33+4*j+2*i}, v4")
    return "\n".join(b)
addu("attn", tile())
addu("attnperm", tile(cv="perm"))
addu("expcvt", tile(mfma=False))
addu("expperm", tile(mfma=False, cv="perm"))
addu("expmfma", tile(cv=None))
addu("expmfma8", tile(cv=None, nm=8))
b = []
for j in range(16):
    b.append(f"  v_exp_f32 v{96+j}, v{16+j}")
    b.append(f"  v_fma_f32 v{64+j}, v{32+j}, v{33+j}, v{64+j}")
addu("expfma", "\n".join(b))
print(" ".join(files))
```

```python
from mb_gen import *
pre = "  s_mul_i32 s44, s2, 4096\n"
for i in range(0, 56, 4):
    pre += f"  buffer_load_dwordx4 v[{8+i}:{11+i}], v3, s[12:15], s44 offen offset:{(i*64)%4096}\n  s_add_u32 s44, s44, 0x20000\n"
pre += "  s_waitcnt vmcnt(0)\n"
zr = "  v_and_b32 v4, 31, v2\n  v_cmp_gt_u32 vcc, 20, v4\n  s_nop 1\n" + "".join(f"  v_cndmask_b32 v{24+i}, 0, v{24+i}, vcc\n" for i in range(8))
zh = "  v_cmp_gt_u32 vcc, 32, v2\n  s_nop 1\n" + "".join(f"  v_cndmask_b32 v{192+i}, 0, v{20+i%4}, vcc\n" for i in range(6))
def step(mode):
    b = []
    def E(lo, hi):
        for i in range(lo, hi): b.append(f"  v_exp_f32 v{128+i}, v{32+i}")
    def C(lo):
        for i in range(4): b.append(f"  v_cvt_pk_bf16_f32 v{160+lo//2+i}, v{128+lo+2*i}, v{129+lo+2*i}")
    def QK(q):
        if mode == "no1": return
        c = "0" if mode == "c0" else "v[176:191]"
        if mode == "m16":
            for k in range(4): b.append(f"  v_mfma_f32_16x16x32_bf16 v[{64+16*q+4*k}:{67+16*q+4*k}], v[8:11], v[{12+4*q}:{15+4*q}], v[176:179]")
        else: b.append(f"  v_mfma_f32_32x32x16_bf16 v[{64+16*q}:{79+16*q}], v[8:11], v[{12+4*q}:{15+4*q}], {c}")
    def QK2(h):
        if mode in ("no2", "m16"): return
        if mode == "x8":
            b.append(f"  v_mfma_f32_32x32x8_bf16 v[{64+16*h}:{79+16*h}], v[192:193], v[{194+2*h}:{195+2*h}], v[{64+16*h}:{79+16*h}]")
        elif h == 0: b.append(f"  v_mfma_f32_32x32x4_2b_bf16 v[64:95], v[20:21], v[22:23], v[64:95]")
    def PV(q, j, p):
        if mode == "pv16":
            for k in range(2): b.append(f"  v_mfma_f32_16x16x32_bf16 v[{96+16*q+8*j+4*k}:{99+16*q+8*j+4*k}], v[{24+4*k}:{27+4*k}], v[{160+p}:{163+p}], v[{96+16*q+8*j+4*k}:{99+16*q+8*j+4*k}]")
        elif mode == "pvswap":
            b.append(f"  v_mfma_f32_32x32x16_bf16 v[{96+16*q}:{111+16*q}], v[{160+p}:{163+p}], v[{24+4*j}:{27+4*j}], v[{96+16*q}:{111+16*q}]")
        else: b.append(f"  v_mfma_f32_32x32x16_bf16 v[{96+16*q}:{111+16*q}], v[{24+4*j}:{27+4*j}], v[{160+p}:{163+p}], v[{96+16*q}:{111+16*q}]")
    PV(1,1,12); E(0,4); QK(0); E(4,8); C(0); QK(1); E(8,12); PV(0,0,0); E(12,16); C(8); QK2(0); E(16,20); QK2(1); E(20,24); PV(0,1,4); C(16); E(24,28); PV(1,0,8); E(28,32); C(24)
    b.append("  s_nop 1")
    return "\n".join(b)
for rep in range(2):
  for tag in ("base", "no1", "no2", "x8", "c0", "m16", "pv16", "pvswap"):
    add(f"q{rep}_{tag}", "\n".join([step(tag)] * 4), iters=8, wpss=(2,), nv=200, pre=pre + zr + zh)
print(" ".join(files))
```

```python
from mb_gen import *
def dma(tag, lane_expr, steps, wgoff, wrap, depth=32, wpss=(1,), reg=False, mods='', nrd=0, rop='ds_read_b128', rw=4):
    pre = lane_expr + f"""
  s_mul_i32 s40, s2, {wgoff}
  s_and_b32 s40, s40, 0x7fffff
  s_mul_i32 s41, s20, {steps[8]}
  s_add_u32 s40, s40, s41
  s_mov_b32 s42, 0
  s_lshl_b32 s43, s20, 13
"""
    b = []
    for i in range(8):
        b.append(f"  s_add_u32 m0, s43, {i*1024}")
        b.append(f"  s_add_u32 s44, s40, s42")
        b.append(f"  s_add_u32 s44, s44, {steps[i]}")
        if reg:
            b.append(f"  buffer_load_dwordx4 v[{16+4*i}:{19+4*i}], v8, s[12:15], s44 offen")
        else:
            b.append(f"  buffer_load_dwordx4 v8, s[12:15], s44 offen {mods} lds")
        for r in range(nrd): b.append(f"  {rop} v[{64+4*(r%8)}:{63+rw+4*(r%8)}], v3 offset:{65536 - 4096*(1+(r%4))}")
    b.append("  s_waitcnt lgkmcnt(8)")
    b.append(f"  s_add_u32 s42, s42, {steps[9]}")
    b.append(f"  s_cmp_ge_u32 s42, {wrap}")
    b.append(f"  s_cselect_b32 s42, 0, s42")
    b.append(f"  s_waitcnt vmcnt({depth-8})")
    add(tag, "\n".join(b), iters=200, wpss=wpss, pre=pre, lds=65536*2)
lin = "  v_lshlrev_b32 v8, 4, v2\n"
rows128 = "  v_lshrrev_b32 v8, 3, v2\n  v_mul_u32_u24 v8, 1280, v8\n  v_and_b32 v9, 7, v2\n  v_lshl_add_u32 v8, v9, 4, v8\n"
rows256 = "  v_lshrrev_b32 v8, 4, v2\n  v_mul_u32_u24 v8, 3840, v8\n  v_and_b32 v9, 15, v2\n  v_lshl_add_u32 v8, v9, 4, v8\n"
rows64 = "  v_lshrrev_b32 v8, 2, v2\n  v_mul_u32_u24 v8, 1280, v8\n  v_and_b32 v9, 3, v2\n  v_lshl_add_u32 v8, v9, 4, v8\n"
frag = "  v_and_b32 v8, 31, v2\n  v_mul_u32_u24 v8, 1280, v8\n  v_lshrrev_b32 v9, 5, v2\n  v_lshl_add_u32 v8, v9, 4, v8\n"


for n in (0, 1, 2, 3, 4):
    dma(f"rd{n}", lin, [i*1024 for i in range(8)] + [8192, 65536], 0, 327680, nrd=n)
for n in (2, 4, 6):
    dma(f"tr{n}", lin, [i*1024 for i in range(8)] + [8192, 65536], 0, 327680, nrd=n, rop="ds_read_b64_tr_b16", rw=2)
print(" ".join(files))
```
